```python
import torch

def _softmax(x, axis=-1):
    return torch.softmax(x, dim=axis)
def _gelu(x):
    return torch.nn.functional.gelu(x, approximate="tanh")
def _silu(x):
    return torch.nn.functional.silu(x)
def _sigmoid(x):
    return torch.sigmoid(x)
def _layernorm(x, axis=-1, eps=1e-5):
    m = x.mean(dim=axis, keepdim=True)
    v = x.var(dim=axis, keepdim=True, unbiased=False)
    return (x - m) / torch.sqrt(v + eps)
def _scatter_add(tgt, idx, src, axis=0):
    return tgt.clone().index_add_(axis, idx, src)
def _segment_sum(src, seg, n):
    out = torch.zeros((n,) + src.shape[1:], dtype=src.dtype)
    return out.index_add_(0, seg, src)
def _pad(x, pw):
    flat = tuple(v for pair in reversed(pw) for v in pair)
    return torch.nn.functional.pad(x, flat)

kernel_name = 'interleave_layers__sliding_block__mixer_channel_mlp__prompt'

def setup_inputs():

    _w = (lambda a: (lambda t: t.to(torch.bfloat16) if t.is_floating_point() else t)(torch.as_tensor(a)))
    def _A_setup():
        B, S, D = 1, 2048, 448
        return {
            "x": _w((lambda *s: torch.randn(*s, dtype=torch.bfloat16) * 0.05)(B, S, D)),
            "wqkv": _w((lambda *s: torch.randn(*s, dtype=torch.bfloat16) * 0.05)(D, 3 * D)),
            "wo": _w((lambda *s: torch.randn(*s, dtype=torch.bfloat16) * 0.05)(D, D)),
        }
    _A_in = _A_setup()

    def _B_setup():
        B, S, D, F = 1, 2048, 448, 1792
        return {
            "x": _w((lambda *s: torch.randn(*s, dtype=torch.bfloat16) * 0.05)(B, S, D)),
            "w1": _w((lambda *s: torch.randn(*s, dtype=torch.bfloat16) * 0.8)(D, F) * (D ** -0.5)),
            "b1": _w((lambda *s: torch.randn(*s, dtype=torch.bfloat16) * 0.8)(F)),
            "w2": _w((lambda *s: torch.randn(*s, dtype=torch.bfloat16) * 0.8)(F, D) * (F ** -0.5)),
            "b2": _w((lambda *s: torch.randn(*s, dtype=torch.bfloat16) * 0.4)(D)),
        }
    _B_in = _B_setup()

    return {
        "A_x": _A_in["x"],
        "A_wqkv": _A_in["wqkv"],
        "A_wo": _A_in["wo"],
        "B_x": _B_in["x"],
        "B_w1": _B_in["w1"],
        "B_b1": _B_in["b1"],
        "B_w2": _B_in["w2"],
        "B_b2": _B_in["b2"],
    }

def reference(A_x, A_wqkv, A_wo, B_x, B_w1, B_b1, B_w2, B_b2):
    def _A_ref(x, wqkv, wo):
        B, S, D = x.shape
        H = 16; Dh = D // H; W = 256
        qkv = (lambda x, *d: x.permute(*d))((x @ wqkv).reshape(B, S, 3, H, Dh), 2, 0, 3, 1, 4)
        q, k, v = qkv[0], qkv[1], qkv[2]
        scores = torch.einsum("bhqd,bhkd->bhqk", q, k) * (Dh ** -0.5)
        idx = torch.arange(S)
        mask = (idx[:, None] - idx[None, :] >= 0) & (idx[:, None] - idx[None, :] < W)
        scores = torch.where(mask[None, None], scores, -1e9)
        p = _softmax(scores, axis=-1)
        o = torch.einsum("bhqk,bhkd->bhqd", p, v)
        return (lambda x, *d: x.permute(*d))(o, 0, 2, 1, 3).reshape(B, S, D) @ wo

    def _B_ref(x, w1, b1, w2, b2):
        y = _layernorm(x, axis=-1)
        h = _gelu(torch.einsum("bsd,df->bsf", y, w1) + b1)
        return torch.einsum("bsf,fd->bsd", h, w2) + b2

    x = A_x
    x = x + _A_ref(_layernorm(x, axis=-1), A_wqkv, A_wo)
    x = x + _B_ref(_layernorm(x, axis=-1), B_w1, B_b1, B_w2, B_b2)
    x = x + _A_ref(_layernorm(x, axis=-1), A_wqkv, A_wo)
    x = x + _B_ref(_layernorm(x, axis=-1), B_w1, B_b1, B_w2, B_b2)
    return x
```

```python
import re

_RANGE = re.compile(r'^(-?)(\|?)([vas])\[(\d+):(\d+)\]\|?$')
_SINGLE = re.compile(r'^(-?)(\|?)([vas])(\d+)\|?$')

def regs_of(op):
    op = op.strip()
    if op.startswith('abs(') and op.endswith(')'):
        op = op[4:-1]
    if op.startswith('-abs(') and op.endswith(')'):
        op = op[5:-1]
    m = _RANGE.match(op)
    if m:
        return {(m.group(3), i) for i in range(int(m.group(4)), int(m.group(5)) + 1)}
    m = _SINGLE.match(op)
    if m:
        return {(m.group(3), int(m.group(4)))}
    if op in ('vcc',):
        return {('x', 'vcc')}
    if op in ('exec',):
        return {('x', 'exec')}
    if op == 'm0':
        return {('x', 'm0')}
    return set()

def v(n, cnt=1):
    return f'v{n}' if cnt == 1 else f'v[{n}:{n+cnt-1}]'
def a(n, cnt=1):
    return f'a{n}' if cnt == 1 else f'a[{n}:{n+cnt-1}]'
def s(n, cnt=1):
    return f's{n}' if cnt == 1 else f's[{n}:{n+cnt-1}]'

TRANS = ('v_exp_f32', 'v_log_f32', 'v_rcp_f32', 'v_rsq_f32', 'v_sqrt_f32', 'v_sin_f32', 'v_cos_f32', 'v_rcp_iflag_f32')

class Ins:
    __slots__ = ('op', 'ops', 'mods', 'kind', 'rd', 'wr', 'tag', 'text', 'passes', 'srcc', 'srcab', 'data', 'comment')
    def __init__(self, op, ops, mods='', tag=None, comment=None):
        self.op = op; self.ops = list(ops); self.mods = mods; self.tag = tag; self.comment = comment
        self.passes = 0; self.srcc = set(); self.srcab = set(); self.data = set()
        self.classify()
    def classify(self):
        op, ops = self.op, self.ops
        R = [regs_of(o) for o in ops]
        rd, wr = set(), set()
        kind = 'other'
        if op.startswith('v_mfma'):
            kind = 'mfma'
            wr |= R[0]; rd |= R[1] | R[2] | R[3]
            self.srcc = R[3]; self.srcab = R[1] | R[2]
            self.passes = 8 if '32x32' in op else 4
        elif op.startswith('v_'):
            kind = 'valu'
            if op.startswith('v_cmp'):
                wr |= R[0]
                for r in R[1:]: rd |= r
                if op.startswith('v_cmpx'): wr |= {('x', 'exec')}
            elif op.startswith('v_permlane') and 'swap' in op or op == 'v_swap_b32':
                wr |= R[0] | R[1]; rd |= R[0] | R[1]
            elif op.startswith(('v_add_co', 'v_sub_co', 'v_subrev_co', 'v_addc_co', 'v_subb_co', 'v_mad_u64', 'v_div_scale')):
                wr |= R[0] | R[1]
                for r in R[2:]: rd |= r
            else:
                wr |= R[0]
                for r in R[1:]: rd |= r
                if op.startswith(('v_fmac', 'v_pk_fmac', 'v_dot2c', 'v_dot4c', 'v_writelane')) or 'dpp' in self.mods or 'row_' in self.mods or 'quad_perm' in self.mods:
                    rd |= R[0]
        elif op.startswith('ds_'):
            kind = 'ds'
            if op.startswith(('ds_read', 'ds_bpermute', 'ds_permute', 'ds_swizzle')):
                wr |= R[0]
                for r in R[1:]: rd |= r
            else:
                for r in R: rd |= r
                for r in R[1:]: self.data |= r
        elif op.startswith(('buffer_', 'global_')):
            kind = 'vmem'
            islds = ' lds' in (' ' + self.mods)
            if 'load' in op and not islds and not op.startswith('global_load_lds'):
                wr |= R[0]
                for r in R[1:]: rd |= r
            else:
                for r in R: rd |= r
                if islds or op.startswith('global_load_lds'):
                    rd |= {('x', 'm0')}
                if 'store' in op or 'atomic' in op:
                    self.data = R[0] if op.startswith('buffer_') else R[1]
                    if 'atomic' in op and 'sc0' in self.mods and op.startswith('buffer_'):
                        wr |= R[0]
            if op in ('buffer_wbl2', 'buffer_inv'):
                rd, wr = set(), set()
        elif op.startswith('s_'):
            kind = 'salu'
            if op.startswith(('s_load', 's_buffer_load', 's_memtime', 's_memrealtime')):
                kind = 'smem'
                wr |= R[0]
                for r in R[1:]: rd |= r
            elif op.startswith(('s_cmp', 's_bitcmp')):
                for r in R: rd |= r
            elif op.startswith(('s_cbranch', 's_branch', 's_barrier', 's_waitcnt', 's_nop', 's_endpgm', 's_setprio', 's_sleep', 's_setreg')):
                kind = 'ctl'
            else:
                if R: wr |= R[0]
                for r in R[1:]: rd |= r
                if 'saveexec' in op: wr |= {('x', 'exec')}; rd |= {('x', 'exec')}
                if op in ('s_addk_i32', 's_mulk_i32'): rd |= R[0]
        self.kind = kind; self.rd = rd; self.wr = wr
    def render(self):
        t = '    ' + self.op
        if self.ops: t += ' ' + ', '.join(self.ops)
        if self.mods: t += ' ' + self.mods
        if self.comment: t += '   ; ' + self.comment
        return t

class Label:
    def __init__(self, name): self.name = name
class Raw:
    def __init__(self, text): self.text = text
class WaitVM:
    def __init__(self, tag): self.tag = tag
class WaitAll:
    def __init__(self, vm=True, lgkm=True): self.vm = vm; self.lgkm = lgkm
class Fence:
    def __init__(self, nops=0): self.nops = nops

class Stream:
    def __init__(self):
        self.items = []
    def __call__(self, op, *ops, mods='', tag=None, c=None):
        i = Ins(op, [str(o) for o in ops], mods, tag, c)
        self.items.append(i)
        return i
    def label(self, n): self.items.append(Label(n))
    def raw(self, t): self.items.append(Raw(t))
    def waitvm(self, tag): self.items.append(WaitVM(tag))
    def waitall(self, vm=True, lgkm=True): self.items.append(WaitAll(vm, lgkm))
    def fence(self): self.items.append(Fence())
    def extend(self, other): self.items.extend(other.items if isinstance(other, Stream) else other)
    def comment(self, t): self.items.append(Raw('    ; ' + t))

def interleave(main, fill, ratio=None):
    main = main.items if isinstance(main, Stream) else main
    fill = fill.items if isinstance(fill, Stream) else fill
    nm = sum(1 for i in main if isinstance(i, Ins) and i.kind == 'mfma')
    if nm == 0:
        return list(main) + list(fill)
    out = []; k = 0; done = 0
    for it in main:
        out.append(it)
        if isinstance(it, Ins) and it.kind == 'mfma':
            k += 1
            want = (len(fill) * k + nm - 1) // nm
            while done < want:
                out.append(fill[done]); done += 1
    out.extend(fill[done:])
    return out

def finalize(items, check_only=False):
    out = []
    lg = []
    vm = []
    smem_pending = set(); smem_cnt = 0
    pos = 0
    last_valu_w = {}
    last_trans_w = {}
    last_mfma_w = {}
    last_mfma_c = {}
    last_salu_m0 = -100
    last_store_data = {}
    def emit(text, states=1):
        nonlocal pos
        out.append(text); pos += states
    def do_wait(vmn=None, lgn=None):
        nonlocal lg, vm, smem_pending, smem_cnt
        parts = []
        if vmn is not None:
            vmn = min(vmn, 63)
            if vmn < len(vm):
                parts.append(f'vmcnt({vmn})'); vm = vm[len(vm) - vmn:] if vmn else []
        if lgn is not None:
            if smem_cnt: lgn = 0
            lgn = min(lgn, 15)
            if lgn < len(lg) or smem_cnt:
                parts.append(f'lgkmcnt({lgn})'); lg = lg[len(lg) - lgn:] if lgn else []
                smem_pending = set(); smem_cnt = 0
        if parts: emit('    s_waitcnt ' + ' '.join(parts))
    for it in items:
        if isinstance(it, Raw):
            out.append(it.text); continue
        if isinstance(it, Label):
            out.append(it.name + ':'); continue
        if isinstance(it, Fence):
            worst = 0
            for r, (p, ps, _) in last_mfma_w.items(): worst = max(worst, (12 if ps == 8 else 8) - (pos - p))
            for r, p in last_valu_w.items(): worst = max(worst, 5 - (pos - p))
            if worst > 0: emit(f'    s_nop {worst-1}', worst)
            continue
        if isinstance(it, WaitAll):
            do_wait(0 if it.vm else None, 0 if it.lgkm else None); continue
        if isinstance(it, WaitVM):
            idx = None
            for k, (d, t) in enumerate(vm):
                if t == it.tag: idx = k
            if idx is not None: do_wait(vmn=len(vm) - 1 - idx)
            continue
        I = it
        touched = I.rd | I.wr
        need_lg = None; need_vm = None
        for k, d in enumerate(lg):
            if d & touched: need_lg = len(lg) - 1 - k
        for k, (d, t) in enumerate(vm):
            if d & touched: need_vm = len(vm) - 1 - k
        if smem_pending & touched: need_lg = 0
        if need_lg is not None or need_vm is not None: do_wait(need_vm, need_lg)
        need = 0
        def req(p, n):
            nonlocal need
            need = max(need, n - (pos - p) + 1 - 1 + 0) if False else max(need, n - (pos - p - 1) + 0 - 0) if False else max(need, n - (pos - p) + 1 - 1)
        def require(p, n):
            nonlocal need
            gap = pos - p - 1
            if gap < n: need = max(need, n - gap)
        if I.kind == 'mfma':
            for r in I.rd:
                if r in last_valu_w: require(last_valu_w[r], 2)
            for r in I.srcab:
                if r in last_mfma_w: require(last_mfma_w[r][0], 12 if last_mfma_w[r][1] == 8 else 8)
            for r in I.srcc:
                if r in last_mfma_w:
                    p, ps, dset = last_mfma_w[r]
                    if not (dset == I.srcc and ps == I.passes): require(p, 10 if ps == 8 else 6)
            for r in I.wr:
                if r in last_mfma_w and r not in I.srcc:
                    p, ps, dset = last_mfma_w[r]
                    require(p, 10 if ps == 8 else 6)
            if ('x', 'exec') in last_valu_w: require(last_valu_w[('x', 'exec')], 4)
        elif I.kind in ('valu', 'ds', 'vmem'):
            for r in touched:
                if r in last_mfma_w: require(last_mfma_w[r][0], 12 if last_mfma_w[r][1] == 8 else 8)
            if I.kind == 'valu':
                for r in I.wr:
                    if r in last_mfma_c: require(last_mfma_c[r][0], 7 if last_mfma_c[r][1] == 8 else 3)
                    if r in last_store_data: require(last_store_data[r], 2)
                for r in I.rd:
                    if r[0] in ('s', 'x') and r in last_valu_w:
                        require(last_valu_w[r], 4 if I.op.startswith(('v_readlane', 'v_writelane', 'v_div_fmas')) else 2)
                    if r in last_trans_w and I.op not in TRANS: require(last_trans_w[r], 1)
                    if r in last_trans_w and I.op in TRANS: require(last_trans_w[r], 1)
                    if r[0] in 'va' and r in last_valu_w:
                        if I.op.startswith(('v_readlane', 'v_readfirstlane')): require(last_valu_w[r], 1)
                        if I.op.startswith('v_permlane') or 'dpp' in I.mods or 'row_' in I.mods or 'quad_perm' in I.mods:
                            require(last_valu_w[r], 2)
            else:
                for r in I.rd:
                    if r[0] == 's' and r in last_valu_w: require(last_valu_w[r], 5)
                    if r in last_trans_w: require(last_trans_w[r], 1)
                for r in I.wr:
                    if r in last_store_data: require(last_store_data[r], 1)
                    if r in last_mfma_c: require(last_mfma_c[r][0], 7 if last_mfma_c[r][1] == 8 else 3)
                if ('x', 'm0') in I.rd: require(last_salu_m0, 1)
        elif I.kind in ('salu', 'smem'):
            for r in I.rd:
                if r in last_valu_w: require(last_valu_w[r], 2)
        elif I.kind == 'ctl':
            if I.op in ('s_cbranch_vccz', 's_cbranch_vccnz') and ('x', 'vcc') in last_valu_w:
                require(last_valu_w[('x', 'vcc')], 5)
        while need > 0:
            n = min(need, 16)
            emit(f'    s_nop {n-1}', n); need -= n
        p = pos
        st = 1
        if I.op == 's_nop': st = int(I.ops[0]) + 1
        if I.op == 's_waitcnt':
            raise ValueError('use waitvm/waitall')
        emit(I.render(), st)
        if I.kind == 'mfma':
            for r in I.wr:
                last_mfma_w[r] = (p, I.passes, frozenset(I.wr)); last_valu_w.pop(r, None); last_trans_w.pop(r, None)
            for r in I.srcc: last_mfma_c[r] = (p, I.passes)
        elif I.kind == 'valu':
            for r in I.wr:
                last_valu_w[r] = p; last_mfma_w.pop(r, None)
                if I.op in TRANS: last_trans_w[r] = p
                else: last_trans_w.pop(r, None)
        elif I.kind == 'ds':
            lg.append(set(I.wr))
            for r in I.wr: last_mfma_w.pop(r, None); last_valu_w.pop(r, None); last_trans_w.pop(r, None)
        elif I.kind == 'vmem':
            if I.op not in ('buffer_wbl2', 'buffer_inv') or True:
                vm.append((set(I.wr), I.tag))
            for r in I.wr: last_mfma_w.pop(r, None); last_valu_w.pop(r, None); last_trans_w.pop(r, None)
            if I.data and ('x3' in I.op or 'x4' in I.op):
                for r in I.data: last_store_data[r] = p
            if len(vm) > 63:
                raise ValueError('too many outstanding vmem ops')
        elif I.kind == 'smem':
            smem_pending |= I.wr; smem_cnt += 1
        elif I.kind == 'salu':
            if ('x', 'm0') in I.wr: last_salu_m0 = p
            for r in I.wr: last_valu_w.pop(r, None)
        if I.op == 's_barrier':
            pass
    return out
```

```python
import sys, struct, math
from asmfw import *

NAME = 'interleave_layers__sliding_block__mixer_channel_mlp__prompt'
T, D, H, DH, FF = 2048, 448, 16, 28, 1792
TILEB = 28 * 1024
off = 0
def alloc(n):
    global off
    o = off; off += (n + 4095) // 4096 * 4096
    return o
XF = alloc(64 * TILEB)
XN = alloc(64 * TILEB)
QF = alloc(16 * 64 * 2048)
KF = alloc(16 * 64 * 2048)
VF = alloc(16 * 64 * 2048)
OF = alloc(64 * 32 * 1024)
X1F = alloc(64 * TILEB)
ST = alloc(14 * 2048 * 8)
CS = alloc(1792 * 4)
PART = alloc(14 * 64 * TILEB)
WS_USED = off
WS_SIZE = 268435456

def f32bits(x): return struct.unpack('<I', struct.pack('<f', x))[0]
def hexf(x): return '0x%08x' % f32bits(x)

KA = dict(x=0, wqkv=8, wo=16, w1=32, b1=40, w2=48, b2=56, out=64, dbg=72, ws=80)
SIZES = dict(x=T*D*2, wqkv=D*3*D*2, wo=D*D*2, w1=D*FF*2, b1=FF*2, w2=FF*D*2, b2=D*2, out=T*D*2, dbg=256, ws=WS_SIZE)

def load_srds(S, spec):
    for n, b in spec:
        S('s_load_dwordx2', s(b, 2), s(0, 2), KA[n])
    for n, b in spec:
        S('s_mov_b32', s(b + 2), hex(SIZES[n]))
        S('s_mov_b32', s(b + 3), '0x00020000')

def wave_sum_all(S, x, t):
    for r in (8, 4, 2, 1):
        S('v_add_f32_dpp', v(x), v(x), v(x), mods=f'row_ror:{r} row_mask:0xf bank_mask:0xf')
    S('v_mov_b32', v(t), v(x))
    S('v_permlane16_swap_b32', v(x), v(t))
    S('v_add_f32', v(x), v(x), v(t))
    S('v_mov_b32', v(t), v(x))
    S('v_permlane32_swap_b32', v(x), v(t))
    S('v_add_f32', v(x), v(x), v(t))

kernels = []
def finish(name, S, nv, na=0, ns=96):
    lines = finalize(S.items)
    kernels.append((name, lines, nv, na, ns))

def wgmap(S, rb, j, tmp):
    S('s_and_b32', s(rb), s(2), 7)
    S('s_lshl_b32', s(rb), s(rb), 1)
    S('s_lshr_b32', s(tmp), s(2), 3)
    S('s_and_b32', s(tmp), s(tmp), 1)
    S('s_or_b32', s(rb), s(rb), s(tmp))
    S('s_lshr_b32', s(j), s(2), 4)

def lane_wave(S, vl, sw):
    S('v_lshrrev_b32', v(vl), 6, v(0))
    S('v_readfirstlane_b32', s(sw), v(vl))
    S('v_and_b32', v(vl), 63, v(0))

def tr_addr(S, dst, vl, t1, t2):
    S('v_lshrrev_b32', v(t1), 5, v(vl))
    S('v_lshlrev_b32', v(t1), 8, v(t1))
    S('v_bfe_u32', v(t2), v(vl), 2, 2)
    S('v_lshl_add_u32', v(t1), v(t2), 6, v(t1))
    S('v_bfe_u32', v(t2), v(vl), 4, 1)
    S('v_lshl_add_u32', v(t1), v(t2), 5, v(t1))
    S('v_and_b32', v(t2), 3, v(vl))
    S('v_lshl_add_u32', v(dst), v(t2), 3, v(t1))

def wfrag(S, dst, vaddr, ldsoff):
    for vr, base in vaddr:
        if 0 <= ldsoff - base and ldsoff - base + 512 <= 65535:
            S('ds_read_b64_tr_b16', dst(0), v(vr), mods=f'offset:{ldsoff-base}')
            S('ds_read_b64_tr_b16', dst(2), v(vr), mods=f'offset:{ldsoff-base+512}')
            return
    raise ValueError('no base')

def pack_tile(S, dst, src):
    for i in range(8):
        S('v_cvt_pk_bf16_f32', v(dst + i), v(src + 2 * i), v(src + 2 * i + 1))

def gen_k0():
    S = Stream()
    S('s_cmp_ge_u32', s(2), 312)
    S('s_cbranch_scc1', 'L_k0_end')
    load_srds(S, [('x', 4), ('ws', 8), ('w1', 12)])
    lane_wave(S, 1, 20)
    S.waitall()
    S('s_cmp_ge_u32', s(2), 256)
    S('s_cbranch_scc1', 'L_k0_cs')
    S('s_lshl_b32', s(21), s(2), 3)
    S('s_add_u32', s(21), s(21), s(20))
    S('s_mul_i32', s(22), s(21), 896)
    S('v_lshlrev_b32', v(2), 4, v(1))
    for i in range(4): S('v_mov_b32', v(4 + i), 0)
    S('v_cmp_gt_u32', 'vcc', 56, v(1))
    S('s_and_saveexec_b64', s(24, 2), 'vcc')
    S('buffer_load_dwordx4', v(4, 4), v(2), s(4, 4), s(22), mods='offen')
    S('s_mov_b64', 'exec', s(24, 2))
    for i in range(4):
        S('v_lshlrev_b32', v(8 + 2 * i), 16, v(4 + i))
        S('v_and_b32', v(9 + 2 * i), '0xffff0000', v(4 + i))
    S('v_add_f32', v(16), v(8), v(9))
    for i in range(2, 8): S('v_add_f32', v(16), v(16), v(8 + i))
    wave_sum_all(S, 16, 17)
    S('v_mul_f32', v(16), hexf(1.0 / 448), v(16))
    for i in range(8): S('v_sub_f32', v(8 + i), v(8 + i), v(16))
    S('v_mul_f32', v(18), v(8), v(8))
    for i in range(1, 8): S('v_fmac_f32', v(18), v(8 + i), v(8 + i))
    S('v_cndmask_b32', v(18), 0, v(18), 'vcc')
    wave_sum_all(S, 18, 17)
    S('v_mov_b32', v(19), hexf(1e-5))
    S('v_fmac_f32', v(19), hexf(1.0 / 448), v(18))
    S('v_rsq_f32', v(19), v(19))
    for i in range(8): S('v_mul_f32', v(8 + i), v(8 + i), v(19))
    for i in range(4): S('v_cvt_pk_bf16_f32', v(20 + i), v(8 + 2 * i), v(9 + 2 * i))
    S('v_and_b32', v(30), 1, v(1))
    S('v_cmp_eq_u32', s(26, 2), 0, v(30))
    def exch(src, dst):
        S('v_cndmask_b32', v(32), v(src + 0), v(src + 2), s(26, 2))
        S('v_cndmask_b32', v(33), v(src + 1), v(src + 3), s(26, 2))
        S('v_mov_b32_dpp', v(34), v(32), mods='quad_perm:[1,0,3,2] row_mask:0xf bank_mask:0xf')
        S('v_mov_b32_dpp', v(35), v(33), mods='quad_perm:[1,0,3,2] row_mask:0xf bank_mask:0xf')
        S('v_cndmask_b32', v(dst + 0), v(34), v(src + 0), s(26, 2))
        S('v_cndmask_b32', v(dst + 1), v(35), v(src + 1), s(26, 2))
        S('v_cndmask_b32', v(dst + 2), v(src + 2), v(34), s(26, 2))
        S('v_cndmask_b32', v(dst + 3), v(src + 3), v(35), s(26, 2))
    exch(4, 36)
    exch(20, 40)
    S('s_lshr_b32', s(23), s(21), 5)
    S('s_mul_i32', s(23), s(23), TILEB)
    S('s_and_b32', s(28), s(21), 31)
    S('s_lshl_b32', s(28), s(28), 4)
    S('s_add_u32', s(23), s(23), s(28))
    S('s_add_u32', s(28), s(23), XN)
    if XF: S('s_add_u32', s(23), s(23), XF)
    S('v_lshlrev_b32', v(2), 9, v(1))
    S('s_and_b64', 'exec', 'exec', 'vcc')
    S('buffer_store_dwordx4', v(36, 4), v(2), s(8, 4), s(23), mods='offen')
    S('buffer_store_dwordx4', v(40, 4), v(2), s(8, 4), s(28), mods='offen')
    S('s_endpgm')
    S.label('L_k0_cs')
    S.fence()
    S('s_sub_u32', s(21), s(2), 256)
    S('v_lshlrev_b32', v(2), 2, v(1))
    S('v_mov_b32', v(3), 0)
    S('ds_write_b32', v(2), v(3), mods='offset:28672')
    S('v_lshrrev_b32', v(4), 2, v(1))
    S('s_mov_b32', s(22), 3584)
    S('v_mul_lo_u32', v(4), v(4), s(22))
    S('v_and_b32', v(5), 3, v(1))
    S('v_lshl_add_u32', v(4), v(5), 4, v(4))
    S('s_lshl_b32', s(23), s(21), 6)
    S('s_mul_i32', s(24), s(20), 16 * 3584)
    S('s_add_u32', s(23), s(23), s(24))
    S('s_lshl_b32', s(25), s(20), 10)
    tr_addr(S, 6, 1, 7, 8)
    S('v_add_u32', v(6), s(25), v(6))
    for i in range(4):
        S('s_mov_b32', 'm0', s(25))
        S('buffer_load_dwordx4', v(4), s(12, 4), s(23), mods='offen lds', tag='dma')
        S('s_add_u32', s(23), s(23), 8 * 16 * 3584)
        S('s_add_u32', s(25), s(25), 8192)
    for i in range(4): S('v_mov_b32', v(12 + i), '0x3f803f80')
    for i in range(16): S('v_mov_b32', v(32 + i), 0)
    S.waitall()
    S('s_barrier')
    for i in range(4):
        if i == 3:
            S('s_cmp_ge_u32', s(20), 4)
            S('s_cbranch_scc1', 'L_k0_cs2')
        wfrag(S, lambda o: v(16 + o, 2), [(6, 0)], 8192 * i)
        S('v_mfma_f32_32x32x16_bf16', v(32, 16), v(16, 4), v(12, 4), v(32, 16))
    S.label('L_k0_cs2')
    S.fence()
    S('v_and_b32', v(7), 31, v(1))
    S('v_cmp_eq_u32', 'vcc', 0, v(7))
    S('v_lshrrev_b32', v(7), 5, v(1))
    S('v_lshlrev_b32', v(7), 4, v(7))
    S('s_and_saveexec_b64', s(26, 2), 'vcc')
    for r in range(16):
        S('ds_add_f32', v(7), v(32 + r), mods=f'offset:{28672 + ((r & 3) + 8 * (r >> 2)) * 4}')
    S('s_mov_b64', 'exec', s(26, 2))
    S.waitall()
    S('s_barrier')
    S('s_cmp_lg_u32', s(20), 0)
    S('s_cbranch_scc1', 'L_k0_end')
    S('ds_read_b32', v(3), v(2), mods='offset:28672')
    S('s_lshl_b32', s(23), s(21), 7)
    S('s_add_u32', s(23), s(23), CS)
    S('v_cmp_gt_u32', 'vcc', 32, v(1))
    S('s_and_b64', 'exec', 'exec', 'vcc')
    S('buffer_store_dword', v(3), v(2), s(8, 4), s(23), mods='offen')
    S.label('L_k0_end')
    S('s_endpgm')
    finish('k0_kernel', S, 48)

def gen_k1():
    S = Stream()
    S('s_cmp_ge_u32', s(2), 256)
    S('s_cbranch_scc1', 'L_k1_end')
    load_srds(S, [('wqkv', 4), ('ws', 8)])
    wgmap(S, 16, 17, 18)
    lane_wave(S, 1, 20)
    S('v_lshrrev_b32', v(4), 2, v(1))
    S('s_mov_b32', s(22), 2688)
    S('v_mul_lo_u32', v(4), v(4), s(22))
    S('v_and_b32', v(5), 3, v(1))
    S('v_lshl_add_u32', v(4), v(5), 4, v(4))
    S('s_mul_i32', s(23), s(20), 16 * 2688)
    S('s_mul_i32', s(24), s(17), 56)
    S('s_add_u32', s(23), s(23), s(24))
    S('s_mul_i32', s(25), s(20), 3072)
    S('v_lshlrev_b32', v(2), 4, v(1))
    S('s_lshl_b32', s(26), s(16), 2)
    S('s_add_u32', s(26), s(26), s(20))
    S('s_mul_i32', s(27), s(26), TILEB)
    S('s_add_u32', s(27), s(27), XN)
    XR = 0
    for g in range(7):
        for p in range(3):
            S('s_add_u32', s(28), s(23), p * 896)
            S('s_add_u32', 'm0', s(25), p * 1024)
            S('buffer_load_dwordx4', v(4), s(4, 4), s(28), mods='offen lds')
        for i in range(4):
            S('buffer_load_dwordx4', a(XR + 4 * (4 * g + i), 4), v(2), s(8, 4), s(27), mods=f'offen offset:{i*1024}', tag=f'g{g}' if i == 3 else None)
        S('s_add_u32', s(23), s(23), 4 * 16 * 2688)
        S('s_add_u32', s(25), s(25), 4 * 3072)
        S('s_add_u32', s(27), s(27), 4096)
    tr_addr(S, 6, 1, 7, 8)
    S('v_add_u32', v(7), 49152, v(6))
    ACC = 16
    WB = 64
    stages = [(0, 1), (2, 3), (4, 6)]
    for (g0, g1) in stages:
        S.waitvm(f'g{g1}')
        S('s_barrier')
        ks_list = list(range(4 * g0, 4 * g1 + 4))
        def rd(ks):
            for p in range(3):
                base = WB + (ks & 1) * 12 + p * 4
                wfrag(S, lambda o, base=base: v(base + o, 2), [(6, 0), (7, 49152)], (ks * 3 + p) * 1024)
        rd(ks_list[0])
        for n, ks in enumerate(ks_list):
            if n + 1 < len(ks_list): rd(ks_list[n + 1])
            for p in range(3):
                w = v(WB + (ks & 1) * 12 + p * 4, 4); x = a(XR + 4 * ks, 4)
                acc = v(ACC + 16 * p, 16)
                c = acc if ks else '0'
                if p < 2: S('v_mfma_f32_32x32x16_bf16', acc, w, x, c)
                else:     S('v_mfma_f32_32x32x16_bf16', acc, x, w, c)
    S('s_mov_b32', s(30), 0)
    S('s_mov_b32', s(31), -1)
    S('s_mov_b64', 'exec', s(30, 2))
    for p in range(2):
        for r in range(12, 16): S('v_mov_b32', v(ACC + 16 * p + r), 0)
    S('s_mov_b32', s(30), '0x10000000')
    S('s_mov_b32', s(31), '0x10000000')
    S('s_mov_b64', 'exec', s(30, 2))
    for r in range(16): S('v_mov_b32', v(ACC + 32 + r), 1.0)
    S('s_mov_b32', s(30), '0xe0000000')
    S('s_mov_b32', s(31), '0xe0000000')
    S('s_mov_b64', 'exec', s(30, 2))
    for r in range(16): S('v_mov_b32', v(ACC + 32 + r), 0)
    S('s_mov_b64', 'exec', -1)
    S('s_lshl_b32', s(27), s(17), 6)
    S('s_add_u32', s(27), s(27), s(26))
    S('s_lshl_b32', s(27), s(27), 11)
    for p, base in enumerate((QF, KF, VF)):
        pack_tile(S, WB + 8 * p, ACC + 16 * p)
        S('s_add_u32', s(28), s(27), base)
        S('buffer_store_dwordx4', v(WB + 8 * p, 4), v(2), s(8, 4), s(28), mods='offen')
        S('buffer_store_dwordx4', v(WB + 8 * p + 4, 4), v(2), s(8, 4), s(28), mods='offen offset:1024')
    S.label('L_k1_end')
    S('s_endpgm')
    finish('k1_kernel', S, 88, 112)

def gen_k2():
    S = Stream()
    S('s_cmp_ge_u32', s(2), 256)
    S('s_cbranch_scc1', 'L_k2_end')
    load_srds(S, [('ws', 8)])
    wgmap(S, 16, 17, 18)
    lane_wave(S, 1, 20)
    S('v_lshlrev_b32', v(2), 4, v(1))
    S('s_lshl_b32', s(21), s(17), 17)
    S('s_lshl_b32', s(22), s(16), 2)
    S('s_add_u32', s(26), s(22), s(20))
    for n in range(3):
        S('s_add_i32', s(23), s(26), 4 * n - 8)
        S('s_max_i32', s(23), s(23), 0)
        S('s_lshl_b32', s(23), s(23), 11)
        S('s_add_u32', s(23), s(23), s(21))
        S('s_lshl_b32', s(24), s(20), 11)
        S('s_add_u32', s(24), s(24), 4 * n * 2048)
        for kv, base in enumerate((KF, VF)):
            S('s_add_u32', s(25), s(23), base)
            S('s_add_u32', 'm0', s(24), kv * 24576)
            S('buffer_load_dwordx4', v(2), s(8, 4), s(25), mods='offen lds')
            S('buffer_load_dwordx4', v(2), s(8, 4), s(25), mods='offen offset:1024 lds')
    QR = 8
    S('s_lshl_b32', s(23), s(26), 11)
    S('s_add_u32', s(23), s(23), s(21))
    S('s_add_u32', s(23), s(23), QF)
    S('buffer_load_dwordx4', v(QR, 4), v(2), s(8, 4), s(23), mods='offen')
    S('buffer_load_dwordx4', v(QR + 4, 4), v(2), s(8, 4), s(23), mods='offen offset:1024')
    S('s_lshl_b32', s(24), s(20), 11)
    S('v_add_u32', v(3), s(24), v(2))
    S('v_and_b32', v(4), 31, v(1))
    S('v_lshrrev_b32', v(5), 5, v(1))
    S('v_lshlrev_b32', v(5), 2, v(5))
    S('v_sub_u32', v(4), v(4), v(5))
    S('v_mov_b32', v(5), '0xff800000')
    S.waitall()
    S('s_barrier')
    SR = 32
    KB = 16
    OR = 176
    PB = 192
    VB = 208
    TM = 224
    def rdk(u):
        for ks in range(2):
            S('ds_read_b128', v(KB + (u & 1) * 8 + ks * 4, 4), v(3), mods=f'offset:{u*2048+ks*1024}')
    rdk(0)
    for u in range(9):
        if u + 1 < 9: rdk(u + 1)
        acc = v(SR + 16 * u, 16)
        S('v_mfma_f32_32x32x16_bf16', acc, v(KB + (u & 1) * 8, 4), v(QR, 4), '0')
        S('v_mfma_f32_32x32x16_bf16', acc, v(KB + (u & 1) * 8 + 4, 4), v(QR + 4, 4), acc)
    for r in range(16):
        kr = (r & 3) + 8 * (r >> 2)
        S('v_cmp_le_i32', 'vcc', kr, v(4))
        S('v_cndmask_b32', v(SR + 128 + r), v(5), v(SR + 128 + r), 'vcc')
        S('v_cndmask_b32', v(SR + r), v(SR + r), v(5), 'vcc')
    for u in range(8):
        S('s_add_i32', s(23), s(26), u - 8)
        S('s_cmp_lt_i32', s(23), 0)
        S('s_cselect_b32', s(32 + u), '0xff800000', 0)
    for u in range(9):
        b = SR + 16 * u
        t = TM + u
        S('v_max3_f32', v(t), v(b), v(b + 1), v(b + 2))
        for i in range(3, 15, 2):
            S('v_max3_f32', v(t), v(t), v(b + i), v(b + i + 1))
        S('v_max_f32', v(t), v(t), v(b + 15))
        if u < 8: S('v_add_f32', v(t), s(32 + u), v(t))
    M = TM + 9
    S('v_max3_f32', v(M), v(TM), v(TM + 1), v(TM + 2))
    for i in range(3, 9, 2): S('v_max3_f32', v(M), v(M), v(TM + i), v(TM + i + 1))
    S('v_mov_b32', v(M + 1), v(M))
    S('v_permlane32_swap_b32', v(M), v(M + 1))
    S('v_max_f32', v(M), v(M), v(M + 1))
    cexp = math.log2(math.e) / math.sqrt(DH)
    S('s_mov_b32', s(40), hexf(cexp))
    S('v_mul_f32', v(M), hexf(-cexp), v(M))
    def rdv(u):
        for ks in range(2):
            S('ds_read_b128', v(VB + (u & 1) * 8 + ks * 4, 4), v(3), mods=f'offset:{24576+u*2048+ks*1024}')
    rdv(0)
    for u in range(9):
        if u + 1 < 9: rdv(u + 1)
        b = SR + 16 * u
        if u < 8:
            S('v_add_f32', v(M + 1), s(32 + u), v(M)); nm = M + 1
        else: nm = M
        for r in range(16):
            S('v_fma_f32', v(b + r), v(b + r), s(40), v(nm))
        for r in range(16):
            S('v_exp_f32', v(b + r), v(b + r))
        pb = PB + (u & 1) * 8
        pack_tile(S, pb, b)
        S('v_mfma_f32_32x32x16_bf16', v(OR, 16), v(VB + (u & 1) * 8, 4), v(pb, 4), v(OR, 16) if u else '0')
        S('v_mfma_f32_32x32x16_bf16', v(OR, 16), v(VB + (u & 1) * 8 + 4, 4), v(pb + 4, 4), v(OR, 16))
    S('v_mov_b32', v(TM), v(OR + 12))
    S('v_mov_b32', v(TM + 1), v(OR + 12))
    S('v_permlane32_swap_b32', v(TM), v(TM + 1))
    S('v_rcp_f32', v(TM + 1), v(TM + 1))
    for r in range(16): S('v_mul_f32', v(OR + r), v(OR + r), v(TM + 1))
    S('s_mov_b32', s(30), 0)
    S('s_mov_b32', s(31), -1)
    S('s_mov_b64', 'exec', s(30, 2))
    for r in range(12, 16): S('v_mov_b32', v(OR + r), 0)
    S('s_mov_b64', 'exec', -1)
    pack_tile(S, PB, OR)
    S('s_lshl_b32', s(23), s(26), 15)
    S('s_lshl_b32', s(24), s(17), 11)
    S('s_add_u32', s(23), s(23), s(24))
    S('s_add_u32', s(23), s(23), OF)
    S('buffer_store_dwordx4', v(PB, 4), v(2), s(8, 4), s(23), mods='offen')
    S('buffer_store_dwordx4', v(PB + 4, 4), v(2), s(8, 4), s(23), mods='offen offset:1024')
    S.label('L_k2_end')
    S('s_endpgm')
    finish('k2_kernel', S, 240)

def gen_k3():
    S = Stream()
    S('s_cmp_ge_u32', s(2), 224)
    S('s_cbranch_scc1', 'L_k3_end')
    load_srds(S, [('wo', 4), ('ws', 8)])
    wgmap(S, 16, 17, 18)
    lane_wave(S, 1, 20)
    S('v_lshrrev_b32', v(4), 2, v(1))
    S('s_mov_b32', s(22), 896)
    S('v_mul_lo_u32', v(4), v(4), s(22))
    S('v_and_b32', v(5), 3, v(1))
    S('v_lshl_add_u32', v(4), v(5), 4, v(4))
    S('v_lshlrev_b32', v(2), 4, v(1))
    S('s_lshl_b32', s(26), s(16), 2)
    S('s_add_u32', s(26), s(26), s(20))
    S('s_lshl_b32', s(27), s(26), 15)
    S('s_add_u32', s(27), s(27), OF)
    S('s_lshr_b32', s(23), s(20), 1)
    S('s_mul_i32', s(23), s(23), 28)
    S('s_and_b32', s(24), s(20), 1)
    S('s_lshl_b32', s(24), s(24), 4)
    S('s_add_u32', s(23), s(23), s(24))
    S('s_mul_i32', s(23), s(23), 896)
    S('s_lshl_b32', s(24), s(17), 6)
    S('s_add_u32', s(23), s(23), s(24))
    S('s_lshl_b32', s(25), s(20), 10)
    for g in range(8):
        S('s_mov_b32', 'm0', s(25))
        S('buffer_load_dwordx4', v(4), s(4, 4), s(23), mods='offen lds')
        for i in range(4):
            S('buffer_load_dwordx4', a(4 * (4 * g + i), 4), v(2), s(8, 4), s(27), mods=f'offen offset:{i*1024}', tag=f'g{g}' if i == 3 else None)
        S('s_add_u32', s(23), s(23), 56 * 896)
        S('s_add_u32', s(25), s(25), 4096)
        S('s_add_u32', s(27), s(27), 4096)
    S('s_mul_i32', s(27), s(26), TILEB)
    S('s_lshl_b32', s(28), s(17), 11)
    S('s_add_u32', s(27), s(27), s(28))
    S('s_add_u32', s(28), s(27), XF)
    RX = 48
    S('buffer_load_dwordx4', v(RX, 4), v(2), s(8, 4), s(28), mods='offen')
    S('buffer_load_dwordx4', v(RX + 4, 4), v(2), s(8, 4), s(28), mods='offen offset:1024')
    tr_addr(S, 6, 1, 7, 8)
    ACC = 16; WB = 32
    for (g0, g1) in [(0, 1), (2, 4), (5, 7)]:
        S.waitvm(f'g{g1}')
        S('s_barrier')
        ks_list = list(range(4 * g0, 4 * g1 + 4))
        def rd(ks):
            base = WB + (ks & 3) * 4
            wfrag(S, lambda o, base=base: v(base + o, 2), [(6, 0)], ks * 1024)
        rd(ks_list[0]); rd(ks_list[1])
        for n, ks in enumerate(ks_list):
            if n + 2 < len(ks_list): rd(ks_list[n + 2])
            S('v_mfma_f32_32x32x16_bf16', v(ACC, 16), v(WB + (ks & 3) * 4, 4), a(4 * ks, 4), v(ACC, 16) if ks else '0')
    for i in range(8):
        S('v_lshlrev_b32', v(56), 16, v(RX + i))
        S('v_and_b32', v(57), '0xffff0000', v(RX + i))
        S('v_add_f32', v(ACC + 2 * i), v(ACC + 2 * i), v(56))
        S('v_add_f32', v(ACC + 2 * i + 1), v(ACC + 2 * i + 1), v(57))
    pack_tile(S, WB, ACC)
    S('s_add_u32', s(28), s(27), X1F)
    S('buffer_store_dwordx4', v(WB, 4), v(2), s(8, 4), s(28), mods='offen')
    S('buffer_store_dwordx4', v(WB + 4, 4), v(2), s(8, 4), s(28), mods='offen offset:1024')
    S('v_mov_b32', v(58), 0)
    S('v_mov_b32', v(59), 0)
    S('v_mov_b32', v(60), '0x3f803f80')
    for i in range(8):
        S('v_dot2_f32_bf16', v(58), v(WB + i), v(60), v(58))
        S('v_dot2_f32_bf16', v(59), v(WB + i), v(WB + i), v(59))
    S('s_nop', 3)
    for x in (58, 59):
        S('v_mov_b32', v(61), v(x))
        S('v_permlane32_swap_b32', v(x), v(61))
        S('v_add_f32', v(x), v(x), v(61))
    S('s_lshl_b32', s(28), s(17), 11)
    S('s_lshl_b32', s(29), s(26), 5)
    S('s_add_u32', s(28), s(28), s(29))
    S('s_lshl_b32', s(28), s(28), 3)
    S('s_add_u32', s(28), s(28), ST)
    S('v_lshlrev_b32', v(3), 3, v(1))
    S('s_mov_b32', s(30), -1)
    S('s_mov_b32', s(31), 0)
    S('s_mov_b64', 'exec', s(30, 2))
    S('buffer_store_dwordx2', v(58, 2), v(3), s(8, 4), s(28), mods='offen')
    S.label('L_k3_end')
    S('s_endpgm')
    finish('k3_kernel', S, 64, 128)

def gelu_stream(S, acc, hb, rt, b1r, tmp):
    c0 = -2.0 * math.log2(math.e) * math.sqrt(2.0 / math.pi)
    c1 = c0 * 0.044715
    for r in range(16):
        x = acc + r; t = tmp + (r & 3) * 2
        S('v_fma_f32', v(x), v(x), v(rt), v(b1r + r))
        S('v_mul_f32', v(t), v(x), v(x))
        S('v_fmaak_f32', v(t), v(t), v(tmp + 8), hexf(c0))
        S('v_mul_f32', v(t), v(t), v(x))
        S('v_exp_f32', v(t), v(t))
        S('v_add_f32', v(t), 1.0, v(t))
        S('v_rcp_f32', v(t), v(t))
        S('v_mul_f32', v(x), v(x), v(t))
        if r & 1:
            S('v_cvt_pk_bf16_f32', v(hb + (r >> 1)), v(x - 1), v(x))

def gen_k4():
    S = Stream()
    S('s_cmp_ge_u32', s(2), 224)
    S('s_cbranch_scc1', 'L_k4_end')
    load_srds(S, [('w1', 4), ('ws', 8), ('w2', 12), ('b1', 44)])
    wgmap(S, 16, 17, 18)
    lane_wave(S, 1, 20)
    UNIT = 28672
    S('v_lshrrev_b32', v(4), 2, v(1))
    S('v_and_b32', v(5), 3, v(1))
    S('s_mov_b32', s(22), 3584)
    S('v_mul_lo_u32', v(9), v(4), s(22))
    S('v_lshl_add_u32', v(9), v(5), 4, v(9))
    S('s_mov_b32', s(22), 896)
    S('v_mul_lo_u32', v(10), v(4), s(22))
    S('v_lshl_add_u32', v(10), v(5), 4, v(10))
    S('v_lshlrev_b32', v(2), 4, v(1))
    S('s_lshl_b32', s(26), s(16), 2)
    S('s_add_u32', s(26), s(26), s(20))
    S('s_mul_i32', s(32), s(20), 16 * 3584)
    S('s_lshl_b32', s(33), s(17), 8)
    S('s_add_u32', s(32), s(32), s(33))
    S('s_lshl_b32', s(33), s(17), 7)
    S('s_and_b32', s(34), s(20), 1)
    S('s_lshl_b32', s(34), s(34), 4)
    S('s_add_u32', s(33), s(33), s(34))
    S('s_mul_i32', s(33), s(33), 896)
    S('s_lshr_b32', s(34), s(20), 1)
    S('s_lshl_b32', s(34), s(34), 6)
    S('s_add_u32', s(33), s(33), s(34))
    S('s_lshl_b32', s(35), s(20), 10)
    def dma_unit(kind, F, slot, tag):
        for g in range(7):
            if kind == 1:
                S('s_add_u32', s(28), s(32), F * 64 + g * 4 * 16 * 3584)
            else:
                S('s_add_u32', s(28), s(33), F * 32 * 896 + g * 128)
            S('s_add_u32', 'm0', s(35), slot * UNIT + g * 4096)
            S('buffer_load_dwordx4', v(9 if kind == 1 else 10), s(4 if kind == 1 else 12, 4), s(28), mods='offen lds', tag=tag if g == 6 else None)
    dma_unit(1, 0, 0, None)
    S('s_mul_i32', s(27), s(26), TILEB)
    S('s_add_u32', s(27), s(27), X1F)
    for g in range(7):
        for i in range(4):
            S('buffer_load_dwordx4', a(4 * (4 * g + i), 4), v(2), s(8, 4), s(27), mods=f'offen offset:{i*1024}')
        S('s_add_u32', s(27), s(27), 4096)
    STR = 200
    S('v_and_b32', v(3), 31, v(1))
    S('v_lshlrev_b32', v(3), 3, v(3))
    S('v_lshrrev_b32', v(4), 5, v(1))
    S('s_mov_b32', s(22), 7 * 2048 * 8)
    S('v_mul_lo_u32', v(5), v(4), s(22))
    S('v_add_u32', v(3), v(3), v(5))
    S('s_lshl_b32', s(28), s(26), 8)
    S('s_add_u32', s(28), s(28), ST)
    for i in range(7):
        S('buffer_load_dwordx2', v(STR + 2 * i, 2), v(3), s(8, 4), s(28), mods='offen', tag='u0' if i == 6 else None)
        S('s_add_u32', s(28), s(28), 2048 * 8)
    S('v_lshlrev_b32', v(11), 4, v(4))
    S('v_lshlrev_b32', v(12), 3, v(4))
    S('s_lshl_b32', s(36), s(17), 9)
    S('s_add_u32', s(36), s(36), CS)
    S('s_lshl_b32', s(37), s(17), 8)
    CSR = 216
    B1R = 232
    B1RAW = 248
    def load_cs(F):
        for g in range(4):
            S('buffer_load_dwordx4', v(CSR + 4 * g, 4), v(11), s(8, 4), s(36), mods=f'offen offset:{F*128+g*32}')
    def load_b1(F):
        for g in range(4):
            S('buffer_load_dwordx2', v(B1RAW + 2 * g, 2), v(12), s(44, 4), s(37), mods=f'offen offset:{F*64+g*16}')
    load_cs(0)
    dma_unit(1, 1, 1, 'u1')
    dma_unit(2, 0, 2, 'u2')
    tr_addr(S, 6, 1, 7, 8)
    S('v_add_u32', v(7), 57344, v(6))
    S('v_add_u32', v(8), 114688, v(6))
    VA = [(6, 0), (7, 57344), (8, 114688)]
    for i in range(1, 7):
        S('v_add_f32', v(STR), v(STR), v(STR + 2 * i))
        S('v_add_f32', v(STR + 1), v(STR + 1), v(STR + 2 * i + 1))
    for x in (STR, STR + 1):
        S('v_mov_b32', v(STR + 2), v(x))
        S('v_permlane32_swap_b32', v(x), v(STR + 2))
        S('v_add_f32', v(x), v(x), v(STR + 2))
    NM = 13; RT = 14; C1 = None
    S('v_mul_f32', v(NM), hexf(-1.0 / 448), v(STR))
    S('v_mul_f32', v(STR + 1), hexf(1.0 / 448), v(STR + 1))
    S('v_fma_f32', v(STR + 1), v(NM), '-' + v(NM), v(STR + 1))
    S('v_max_f32', v(STR + 1), 0, v(STR + 1))
    S('v_add_f32', v(STR + 2), hexf(1e-5), v(STR + 1))
    S('v_rsq_f32', v(RT), v(STR + 2))
    S('v_mul_f32', v(STR + 3), v(RT), v(RT))
    S('v_mov_b32', v(STR + 4), hexf(1e-5))
    S('v_fmac_f32', v(STR + 4), v(STR + 3), v(STR + 1))
    S('v_rsq_f32', v(STR + 4), v(STR + 4))
    S('v_mul_f32', v(RT), v(RT), v(STR + 4))
    dma_unit(1, 2, 3, 'u3')
    dma_unit(2, 1, 4, 'u4')
    HACC = 16
    WB = 48
    HB = 64
    GT = 72
    OV = 96
    STR2 = 192
    c0 = -2.0 * math.log2(math.e) * math.sqrt(2.0 / math.pi)
    S('v_mov_b32', v(GT + 8), hexf(c0 * 0.044715))
    def oacc(Fo): return v(OV + 16 * Fo, 16) if Fo < 6 else a(112 + 16 * (Fo - 6), 16)
    slot_w1 = {0: 0, 1: 1, 2: 3, 3: 0}
    slot_w2 = {0: 2, 1: 4, 2: 1, 3: 2}
    def g1(F):
        acc = HACC + 16 * (F & 1)
        for r in range(16): S('v_mul_f32', v(acc + r), v(NM), v(CSR + r))
        if F + 1 < 4: load_cs(F + 1)
        base = slot_w1[F] * UNIT
        def rd(ks):
            b = WB + (ks & 3) * 4
            wfrag(S, lambda o, b=b: v(b + o, 2), VA, base + ks * 1024)
        rd(0); rd(1)
        for ks in range(28):
            if ks + 2 < 28: rd(ks + 2)
            S('v_mfma_f32_32x32x16_bf16', v(acc, 16), v(WB + (ks & 3) * 4, 4), a(4 * ks, 4), v(acc, 16))
    def gelu(F):
        for g in range(8):
            S('v_lshlrev_b32', v(B1R + 2 * g), 16, v(B1RAW + g))
            S('v_and_b32', v(B1R + 2 * g + 1), '0xffff0000', v(B1RAW + g))
        gelu_stream(S, HACC + 16 * (F & 1), HB, RT, B1R, GT)
    def g2(F):
        base = slot_w2[F] * UNIT
        def rd(b):
            r = WB + (b & 3) * 4
            wfrag(S, lambda o, r=r: v(r + o, 2), VA, base + b * 1024)
        rd(0); rd(1)
        for b in range(28):
            if b + 2 < 28: rd(b + 2)
            Fo, kk = b >> 1, b & 1
            S('v_mfma_f32_32x32x16_bf16', oacc(Fo), v(WB + (b & 3) * 4, 4), v(HB + 4 * kk, 4), oacc(Fo) if (F or kk) else '0')
    def bar(tag=None):
        if tag: S.waitvm(tag)
        S.waitall(vm=False)
        S('s_barrier')
    bar('u0')
    load_b1(0)
    g1(0)
    bar('u2')
    dma_unit(1, 3, 0, 'u5')
    gelu(0); load_b1(1)
    g2(0)
    g1(1)
    bar('u4')
    dma_unit(2, 2, 1, 'u6')
    dma_unit(2, 3, 2, 'u7')
    gelu(1); load_b1(2)
    g2(1)
    g1(2)
    bar('u6')
    gelu(2); load_b1(3)
    g2(2)
    g1(3)
    bar('u7')
    gelu(3)
    g2(3)
    S('s_lshl_b32', s(27), s(17), 6)
    S('s_add_u32', s(27), s(27), s(26))
    S('s_mul_i32', s(27), s(27), TILEB)
    S('s_add_u32', s(27), s(27), PART)
    for Fo in range(14):
        if Fo < 6: src = OV + 16 * Fo
        else:
            src = HACC + 16 * (Fo & 1)
            for r in range(16): S('v_accvgpr_read_b32', v(src + r), a(112 + 16 * (Fo - 6) + r))
        dst = 200 + 8 * (Fo & 3)
        pack_tile(S, dst, src)
        o = (Fo & 1) * 2048
        S('buffer_store_dwordx4', v(dst, 4), v(2), s(8, 4), s(27), mods=f'offen offset:{o}')
        S('buffer_store_dwordx4', v(dst + 4, 4), v(2), s(8, 4), s(27), mods=f'offen offset:{o+1024}')
        if Fo & 1: S('s_add_u32', s(27), s(27), 4096)
    S.label('L_k4_end')
    S('s_endpgm')
    finish('k4_kernel', S, 256, 240)

def gen_k5(last):
    nm = 'k5b' if last else 'k5a'
    S = Stream()
    S('s_cmp_ge_u32', s(2), 256)
    S('s_cbranch_scc1', f'L_{nm}_end')
    load_srds(S, [('b2', 4), ('ws', 8), ('out', 12)])
    wgmap(S, 16, 17, 18)
    S('s_lshl_b32', s(21), s(16), 4)
    S('s_add_u32', s(21), s(21), s(17))
    S('v_lshrrev_b32', v(1), 6, v(0))
    S('v_readfirstlane_b32', s(20), v(1))
    S('v_and_b32', v(1), 7, v(0))
    S('v_lshrrev_b32', v(2), 3, v(0))
    S('v_lshlrev_b32', v(3), 9, v(2))
    S('v_lshl_add_u32', v(3), v(1), 4, v(3))
    S('s_lshr_b32', s(22), s(21), 2)
    S('s_mul_i32', s(22), s(22), TILEB)
    S('s_and_b32', s(23), s(21), 3)
    S('s_lshl_b32', s(23), s(23), 7)
    S('s_add_u32', s(22), s(22), s(23))
    LD = 32
    S('s_add_u32', s(24), s(22), X1F)
    S('buffer_load_dwordx4', v(LD, 4), v(3), s(8, 4), s(24), mods='offen')
    S('s_add_u32', s(24), s(22), PART)
    for j in range(14):
        S('buffer_load_dwordx4', v(LD + 4 + 4 * j, 4), v(3), s(8, 4), s(24), mods='offen')
        S('s_add_u32', s(24), s(24), 64 * TILEB)
    S('v_lshrrev_b32', v(4), 1, v(2))
    S('v_lshlrev_b32', v(4), 5, v(4))
    S('v_and_b32', v(5), 1, v(2))
    S('v_lshl_add_u32', v(4), v(5), 3, v(4))
    S('buffer_load_dwordx2', v(LD + 60, 2), v(4), s(4, 4), 0, mods='offen')
    S('buffer_load_dwordx2', v(LD + 62, 2), v(4), s(4, 4), 0, mods='offen offset:16')
    A = 8
    S('v_mov_b32', v(6), '0x3f80')
    S('v_mov_b32', v(7), '0x3f800000')
    for n in range(16):
        for i in range(4):
            src = LD + 4 * n + i
            if n == 0:
                S('v_lshlrev_b32', v(A + 2 * i), 16, v(src))
                S('v_and_b32', v(A + 2 * i + 1), '0xffff0000', v(src))
            else:
                S('v_dot2_f32_bf16', v(A + 2 * i), v(src), v(6), v(A + 2 * i))
                S('v_dot2_f32_bf16', v(A + 2 * i + 1), v(src), v(7), v(A + 2 * i + 1))
    S('s_nop', 3)
    P = 16
    for i in range(4): S('v_cvt_pk_bf16_f32', v(P + i), v(A + 2 * i), v(A + 2 * i + 1))
    if not last:
        S('s_add_u32', s(24), s(22), XF)
        S('buffer_store_dwordx4', v(P, 4), v(3), s(8, 4), s(24), mods='offen')
        for i in range(4):
            S('v_lshlrev_b32', v(A + 2 * i), 16, v(P + i))
            S('v_and_b32', v(A + 2 * i + 1), '0xffff0000', v(P + i))
        S('v_add_f32', v(20), v(A), v(A + 1))
        S('v_mul_f32', v(21), v(A), v(A))
        S('v_fmac_f32', v(21), v(A + 1), v(A + 1))
        for i in range(2, 8):
            S('v_add_f32', v(20), v(20), v(A + i))
            S('v_fmac_f32', v(21), v(A + i), v(A + i))
        for x in (20, 21):
            S('v_add_f32_dpp', v(x), v(x), v(x), mods='row_ror:8 row_mask:0xf bank_mask:0xf')
            S('v_mov_b32', v(22), v(x))
            S('v_permlane16_swap_b32', v(x), v(22))
            S('v_add_f32', v(x), v(x), v(22))
            S('v_mov_b32', v(22), v(x))
            S('v_permlane32_swap_b32', v(x), v(22))
            S('v_add_f32', v(x), v(x), v(22))
        S('v_lshlrev_b32', v(23), 6, v(1))
        S('s_lshl_b32', s(25), s(20), 3)
        S('v_add_u32', v(24), s(25), v(23))
        S('ds_write_b64', v(24), v(20, 2))
        S.waitall(vm=False)
        S('s_barrier')
        for w in range(7): S('ds_read_b64', v(LD + 2 * w, 2), v(23), mods=f'offset:{8*w}')
        for w in range(1, 7):
            S('v_add_f32', v(LD), v(LD), v(LD + 2 * w))
            S('v_add_f32', v(LD + 1), v(LD + 1), v(LD + 2 * w + 1))
        S('v_mul_f32', v(20), hexf(1.0 / 448), v(LD))
        S('v_mul_f32', v(21), hexf(1.0 / 448), v(LD + 1))
        S('v_fma_f32', v(21), v(20), '-' + v(20), v(21))
        S('v_max_f32', v(21), 0, v(21))
        S('v_add_f32', v(21), hexf(1e-5), v(21))
        S('v_rsq_f32', v(21), v(21))
        for i in range(8):
            S('v_sub_f32', v(A + i), v(A + i), v(20))
            S('v_mul_f32', v(A + i), v(A + i), v(21))
        for i in range(4): S('v_cvt_pk_bf16_f32', v(24 + i), v(A + 2 * i), v(A + 2 * i + 1))
        S('s_add_u32', s(24), s(22), XN)
        S('buffer_store_dwordx4', v(24, 4), v(3), s(8, 4), s(24), mods='offen')
    else:
        S('v_cmp_eq_u32', 'vcc', 0, v(5))
        S('v_cndmask_b32', v(20), v(P + 0), v(P + 2), 'vcc')
        S('v_cndmask_b32', v(21), v(P + 1), v(P + 3), 'vcc')
        S('v_mov_b32_dpp', v(22), v(20), mods='row_ror:8 row_mask:0xf bank_mask:0xf')
        S('v_mov_b32_dpp', v(23), v(21), mods='row_ror:8 row_mask:0xf bank_mask:0xf')
        S('v_cndmask_b32', v(24), v(22), v(P + 0), 'vcc')
        S('v_cndmask_b32', v(25), v(23), v(P + 1), 'vcc')
        S('v_cndmask_b32', v(26), v(P + 2), v(22), 'vcc')
        S('v_cndmask_b32', v(27), v(P + 3), v(23), 'vcc')
        S('s_mul_i32', s(24), s(21), 8 * 896)
        S('s_mov_b32', s(25), 896)
        S('v_mul_lo_u32', v(28), v(1), s(25))
        S('v_lshl_add_u32', v(28), v(2), 4, v(28))
        S('buffer_store_dwordx4', v(24, 4), v(28), s(12, 4), s(24), mods='offen')
    S.label(f'L_{nm}_end')
    S('s_endpgm')
    finish(f'{nm}_kernel', S, 96)

gen_k0(); gen_k1(); gen_k2(); gen_k3(); gen_k4(); gen_k5(False); gen_k5(True)

launches = [('k0_kernel', 312, 512, 29184)]
for L in range(2):
    launches += [('k1_kernel', 256, 256, 86016), ('k2_kernel', 256, 256, 49152), ('k3_kernel', 224, 256, 32768),
                 ('k4_kernel', 224, 256, 143360), ('k5b_kernel' if L else 'k5a_kernel', 256, 448, 512)]
extra = int(sys.argv[2]) if len(sys.argv) > 2 else 0
hdr = open('cdna_kernels/' + NAME + '.s.ref').read().split('\n')
out = [l for l in hdr if l.startswith(';') and '@launch' not in l]
for (k, g, b, l) in launches:
    out.append(f'; @launch kernel={k} grid=({g},1,1) block=({b},1,1) lds={l}')
out.append('.amdgcn_target "amdgcn-amd-amdhsa--gfx950"')
out.append('.text')
for (name, lines, nv, na, ns) in kernels:
    out += [f'.globl {name}', '.p2align 8', f'.type {name},@function', f'{name}:'] + lines
out.append('.section .rodata,"a"')
for (name, lines, nv, na, ns) in kernels:
    acc = (nv + 3) // 4 * 4
    out += ['.p2align 6', f'.amdhsa_kernel {name}', f'  .amdhsa_next_free_vgpr {acc + na if na else nv}',
            f'  .amdhsa_next_free_sgpr {ns}', f'  .amdhsa_accum_offset {acc}', '  .amdhsa_group_segment_fixed_size 0',
            '  .amdhsa_kernarg_size 88', '  .amdhsa_user_sgpr_count 2', '  .amdhsa_user_sgpr_kernarg_segment_ptr 1',
            '  .amdhsa_system_sgpr_workgroup_id_x 1', '.end_amdhsa_kernel']
open(sys.argv[1], 'w').write('\n'.join(out) + '\n')
import json
json.dump(dict(XF=XF, XN=XN, QF=QF, KF=KF, VF=VF, OF=OF, X1F=X1F, ST=ST, CS=CS, PART=PART, WS_USED=WS_USED), open('layout.json', 'w'))
print('ws used', WS_USED)
```
